```python
import torch

def _softmax(x, axis=-1):
    return torch.softmax(x, dim=axis)
def _gelu(x):
    return torch.nn.functional.gelu(x, approximate="tanh")
def _silu(x):
    return torch.nn.functional.silu(x)
def _sigmoid(x):
    return torch.sigmoid(x)
def _layernorm(x, axis=-1, eps=1e-5):
    m = x.mean(dim=axis, keepdim=True)
    v = x.var(dim=axis, keepdim=True, unbiased=False)
    return (x - m) / torch.sqrt(v + eps)
def _scatter_add(tgt, idx, src, axis=0):
    return tgt.clone().index_add_(axis, idx, src)
def _segment_sum(src, seg, n):
    out = torch.zeros((n,) + src.shape[1:], dtype=src.dtype)
    return out.index_add_(0, seg, src)
def _pad(x, pw):
    flat = tuple(v for pair in reversed(pw) for v in pair)
    return torch.nn.functional.pad(x, flat)

kernel_name = 'standalone__mha_block__prompt'

def setup_inputs():

    _w = (lambda a: (lambda t: t.to(torch.bfloat16) if t.is_floating_point() else t)(torch.as_tensor(a)))
    B, S, D, H = 1, 2048, 640, 32
    return {
        "x": _w((lambda *s: torch.randn(*s, dtype=torch.bfloat16) * 0.2)(B, S, D)),
        "wqkv": _w((lambda *s: torch.randn(*s, dtype=torch.bfloat16) * 0.2)(D, 3 * D)),
        "wo": _w((lambda *s: torch.randn(*s, dtype=torch.bfloat16) * 0.05)(D, D)),
    }

def reference(x, wqkv, wo):
    B, S, D = x.shape
    H = 32
    Dh = D // H
    qkv = (lambda x, *d: x.permute(*d))((x @ wqkv).reshape(B, S, 3, H, Dh), 2, 0, 3, 1, 4)
    q, k, v = qkv[0], qkv[1], qkv[2]
    scores = torch.einsum("bhqd,bhkd->bhqk", q, k) * (Dh ** -0.5)
    p = _softmax(scores, axis=-1)
    o = torch.einsum("bhqk,bhkd->bhqd", p, v)
    return (lambda x, *d: x.permute(*d))(o, 0, 2, 1, 3).reshape(B, S, D) @ wo
```

```python
class Asm:
    def __init__(self):
        self.lines = []
    def __call__(self, s):
        for l in s.split("\n"):
            l = l.strip()
            if l:
                self.lines.append("    " + l)
    def label(self, name):
        self.lines.append(name + ":")
    def comment(self, s):
        self.lines.append("    ; " + s)
    def raw(self, s):
        self.lines.append(s)
    def text(self):
        return "\n".join(self.lines) + "\n"

def vr(base, n):
    if n == 1:
        return f"v{base}"
    return f"v[{base}:{base+n-1}]"
def sr(base, n):
    if n == 1:
        return f"s{base}"
    return f"s[{base}:{base+n-1}]"

def kd(name, nvgpr, nsgpr=96, lds_static=0):
    nv = (nvgpr + 7) // 8 * 8
    return f""".p2align 6
.amdhsa_kernel {name}
  .amdhsa_next_free_vgpr {nv}
  .amdhsa_next_free_sgpr {nsgpr}
  .amdhsa_accum_offset {nv}
  .amdhsa_group_segment_fixed_size {lds_static}
  .amdhsa_kernarg_size 48
  .amdhsa_user_sgpr_count 2
  .amdhsa_user_sgpr_kernarg_segment_ptr 1
  .amdhsa_system_sgpr_workgroup_id_x 1
.end_amdhsa_kernel
"""

def buf_off(o):
    assert 0 <= o <= 4095, o
    return f" offset:{o}" if o else ""
def ds_off(o):
    assert 0 <= o <= 65535, o
    return f" offset:{o}" if o else ""
```

```python
from asmlib import *
from gemm import QS_OFF, KV_OFF, KV_HEAD, O_OFF, WS_BYTES, f32hex

def attn_kernel(name):
    a = Asm()
    V_LANE = 1
    V_Q1, V_Q2 = 4, 8
    V_NEGM = 12
    V_S = 28
    V_P = 60
    V_O = 68
    V_K1F = 84
    V_K2F = 92
    V_VF = 100
    V_AK1, V_AK2, V_AV = 116, 119, 122
    T = 126
    S_WS = 44
    NT = 64
    SETSZ = 61440
    a.label(name)
    a(f"""s_cmp_ge_u32 s2, 256
    s_cbranch_scc1 L_{name}_end
    s_load_dwordx2 s[26:27], s[0:1], 40
    v_and_b32 v{V_LANE}, 63, v0
    v_lshrrev_b32 v{T}, 6, v0
    s_nop 0
    v_readfirstlane_b32 s20, v{T}
    s_and_b32 s21, s2, 7
    s_lshl_b32 s21, s21, 2
    s_lshr_b32 s22, s2, 3
    s_and_b32 s23, s22, 3
    s_add_u32 s24, s21, s23
    s_lshr_b32 s25, s2, 5
    s_waitcnt lgkmcnt(0)
    s_mov_b32 s{S_WS}, s26
    s_mov_b32 s{S_WS+1}, s27
    s_mov_b32 s{S_WS+2}, {WS_BYTES}
    s_mov_b32 s{S_WS+3}, 0x00020000""")
    a(f"""s_lshl_b32 s30, s24, 11
    s_lshl_b32 s31, s25, 8
    s_add_u32 s30, s30, s31
    s_lshl_b32 s31, s20, 5
    s_add_u32 s30, s30, s31
    s_mul_i32 s30, s30, 40
    v_and_b32 v{T}, 31, v{V_LANE}
    v_mul_u32_u24 v{T}, 40, v{T}
    v_lshrrev_b32 v{T+1}, 5, v{V_LANE}
    v_lshl_add_u32 v{T+1}, v{T+1}, 4, v{T}
    v_mov_b32 v{V_Q2}, 0
    v_mov_b32 v{V_Q2+1}, 0
    v_mov_b32 v{V_Q2+2}, 0
    v_mov_b32 v{V_Q2+3}, 0
    buffer_load_dwordx4 {vr(V_Q1,4)}, v{T+1}, s[{S_WS}:{S_WS+3}], s30 offen
    s_mov_b64 s[32:33], exec
    s_mov_b64 exec, 0xffffffff
    buffer_load_dwordx2 {vr(V_Q2,2)}, v{T}, s[{S_WS}:{S_WS+3}], s30 offen offset:32
    s_mov_b64 exec, s[32:33]""")
    a(f"""s_mul_i32 s31, s24, {KV_HEAD}
    s_add_u32 s31, s31, {KV_OFF}
    s_lshl_b32 s32, s20, 10
    s_add_u32 s31, s31, s32
    v_lshlrev_b32 v{T+2}, 4, v{V_LANE}""")
    for p in range(20):
        a(f"""s_add_u32 m0, s32, {p*8192}
        s_add_u32 s33, s31, {p*8192}
        buffer_load_dwordx4 v{T+2}, s[{S_WS}:{S_WS+3}], s33 offen lds""")
    a(f"""v_lshlrev_b32 v{V_AK1}, 4, v{V_LANE}
    v_and_b32 v{T}, 31, v{V_LANE}
    v_lshlrev_b32 v{V_AK2}, 3, v{T}
    v_add_u32 v{V_AK2}, 2048, v{V_AK2}
    v_lshrrev_b32 v{T+1}, 5, v{V_LANE}
    v_mul_u32_u24 v{T+1}, 320, v{T+1}
    v_lshl_add_u32 v{V_AV}, v{T}, 4, v{T+1}
    v_add_u32 v{V_AV}, 2560, v{V_AV}""")
    for s_ in (1, 2):
        a(f"""v_add_u32 v{V_AK1+s_}, {SETSZ*s_}, v{V_AK1}
        v_add_u32 v{V_AK2+s_}, {SETSZ*s_}, v{V_AK2}
        v_add_u32 v{V_AV+s_}, {SETSZ*s_}, v{V_AV}""")
    a(f"""s_mov_b32 s34, 0x000fffff
    s_mov_b32 s35, 0x000fffff""")
    for b in range(2):
        a(f"""v_mov_b32 v{V_K2F+b*4+2}, 0
        v_mov_b32 v{V_K2F+b*4+3}, 0""")
    a(f"""v_cmp_eq_u32 vcc, 20, v{T}
    v_mov_b32 v{T+3}, 0
    v_mov_b32 v{T+4}, 0x3f803f80
    s_nop 0
    v_cndmask_b32 v{T+3}, v{T+3}, v{T+4}, vcc""")
    for i in range(16):
        a(f"v_mov_b32 v{V_VF+i}, v{T+3}")
    for i in range(16):
        a(f"v_mov_b32 v{V_NEGM+i}, 0")
        a(f"v_mov_b32 v{V_O+i}, 0")

    def lds(t, what, j=0):
        blk, e = t // 2, t % 2
        if what == "k1":
            off = blk*5120 + e*1024; base = V_AK1
        elif what == "k2":
            off = blk*5120 + e*256; base = V_AK2
        else:
            off = blk*5120 + e*1280 + j*640; base = V_AV
        s_ = off // SETSZ
        return f"v{base+s_}{ds_off(off - s_*SETSZ)}"
    def RK(t):
        b = t % 2
        a(f"ds_read_b128 {vr(V_K1F+b*4,4)}, {lds(t,'k1')}")
        a(f"ds_read_b64 {vr(V_K2F+b*4,2)}, {lds(t,'k2')}")
    def RV(t):
        b = t % 2
        a("s_mov_b64 exec, s[34:35]")
        a(f"ds_read_b128 {vr(V_VF+b*8,4)}, {lds(t,'v',0)}")
        a(f"ds_read_b128 {vr(V_VF+b*8+4,4)}, {lds(t,'v',1)}")
        a("s_mov_b64 exec, -1")
    def SM(t, cbase):
        b = t % 2
        S = vr(V_S + b*16, 16)
        a(f"v_mfma_f32_32x32x16_bf16 {S}, {vr(V_K1F+b*4,4)}, {vr(V_Q1,4)}, {vr(cbase,16)}")
        a(f"v_mfma_f32_32x32x16_bf16 {S}, {vr(V_K2F+b*4,4)}, {vr(V_Q2,4)}, {S}")
    def E(t):
        b = t % 2
        for i in range(16):
            a(f"v_exp_f32 v{V_S+b*16+i}, v{V_S+b*16+i}")
        a("s_nop 0")
        for i in range(8):
            a(f"v_cvt_pk_bf16_f32 v{V_P+i}, v{V_S+b*16+2*i}, v{V_S+b*16+2*i+1}")
    def PV(t):
        b = t % 2
        O = vr(V_O, 16)
        a("s_nop 1")
        a(f"v_mfma_f32_32x32x16_bf16 {O}, {vr(V_VF+b*8,4)}, {vr(V_P,4)}, {O}")
        a(f"v_mfma_f32_32x32x16_bf16 {O}, {vr(V_VF+b*8+4,4)}, {vr(V_P+4,4)}, {O}")
    def chunk_sync(c):
        n = -(-10*(c+1) // 8)
        n = min(n, 20)
        a(f"s_waitcnt vmcnt({20-n})")
        a("s_barrier")

    chunk_sync(0)
    RK(0); RK(1)
    a("s_waitcnt lgkmcnt(0)")
    SM(0, V_NEGM); SM(1, V_NEGM)
    a("s_nop 15")
    a(f"v_max3_f32 v{T}, v{V_S}, v{V_S+1}, v{V_S+2}")
    for i in range(3, 31, 2):
        a(f"v_max3_f32 v{T}, v{T}, v{V_S+i}, v{V_S+i+1}")
    a(f"v_max_f32 v{T}, v{T}, v{V_S+31}")
    a(f"""v_mov_b32 v{T+1}, v{T}
    s_nop 1
    v_permlane32_swap_b32 v{T}, v{T+1}
    s_nop 1
    v_max_f32 v{T}, v{T}, v{T+1}
    v_sub_f32 v{T}, 0, v{T}""")
    for i in range(16):
        a(f"v_mov_b32 v{V_NEGM+i}, v{T}")
    RK(0)
    a("s_waitcnt lgkmcnt(0)")
    a("s_nop 1")
    SM(0, V_NEGM)
    RK(1); RV(0)
    for i in range(NT):
        if i + 1 < NT:
            a("s_waitcnt lgkmcnt(2)")
            SM(i+1, V_NEGM)
        if i + 2 < NT:
            if (i + 2) % 4 == 0:
                chunk_sync((i + 2) // 4)
            RK(i+2)
        if i + 1 < NT:
            RV(i+1)
        E(i)
        if i + 2 < NT:
            a("s_waitcnt lgkmcnt(4)")
        elif i + 1 < NT:
            a("s_waitcnt lgkmcnt(2)")
        else:
            a("s_waitcnt lgkmcnt(0)")
        PV(i)
    a(f"""s_nop 15
    s_nop 3
    v_mov_b32 v{T}, 0x5f800000
    v_cmp_nlt_f32 vcc, v{V_O+8}, v{T}
    s_mov_b32 s36, 0
    s_mov_b32 s37, -1
    s_and_b64 s[36:37], s[36:37], vcc
    s_cmp_eq_u64 s[36:37], 0
    s_cbranch_scc1 L_{name}_fin""")
    for i in range(16):
        a(f"v_mov_b32 v{V_O+i}, 0")
    a(f"""v_mov_b32 v{T+2}, 0xff800000
    v_mov_b32 v{T+4}, v{V_AK1}
    v_mov_b32 v{T+5}, v{V_AK2}
    s_mov_b32 s38, 0""")
    a.label(f"L_{name}_mx")
    for e in range(2):
        a(f"""ds_read_b128 {vr(V_K1F,4)}, v{T+4}{ds_off(e*1024)}
        ds_read_b64 {vr(V_K2F,2)}, v{T+5}{ds_off(e*256)}
        s_waitcnt lgkmcnt(0)
        v_mfma_f32_32x32x16_bf16 {vr(V_S,16)}, {vr(V_K1F,4)}, {vr(V_Q1,4)}, {vr(V_O,16)}
        v_mfma_f32_32x32x16_bf16 {vr(V_S,16)}, {vr(V_K2F,4)}, {vr(V_Q2,4)}, {vr(V_S,16)}
        s_nop 15
        s_nop 3""")
        for i in range(0, 16, 2):
            a(f"v_max3_f32 v{T+2}, v{T+2}, v{V_S+i}, v{V_S+i+1}")
    a(f"""v_add_u32 v{T+4}, 5120, v{T+4}
    v_add_u32 v{T+5}, 5120, v{T+5}
    s_add_u32 s38, s38, 1
    s_cmp_lt_u32 s38, 32
    s_cbranch_scc1 L_{name}_mx
    v_mov_b32 v{T+3}, v{T+2}
    s_nop 1
    v_permlane32_swap_b32 v{T+2}, v{T+3}
    s_nop 1
    v_max_f32 v{T+2}, v{T+2}, v{T+3}
    v_sub_f32 v{T+2}, 0, v{T+2}""")
    for i in range(16):
        a(f"v_mov_b32 v{V_NEGM+i}, v{T+2}")
    a(f"""v_mov_b32 v{T+4}, v{V_AK1}
    v_mov_b32 v{T+5}, v{V_AK2}
    v_mov_b32 v{T+6}, v{V_AV}
    s_mov_b32 s38, 0""")
    a.label(f"L_{name}_rl")
    for e in range(2):
        a(f"""ds_read_b128 {vr(V_K1F,4)}, v{T+4}{ds_off(e*1024)}
        ds_read_b64 {vr(V_K2F,2)}, v{T+5}{ds_off(e*256)}
        s_mov_b64 exec, s[34:35]
        ds_read_b128 {vr(V_VF,4)}, v{T+6}{ds_off(e*1280)}
        ds_read_b128 {vr(V_VF+4,4)}, v{T+6}{ds_off(e*1280+640)}
        s_mov_b64 exec, -1
        s_waitcnt lgkmcnt(0)
        v_mfma_f32_32x32x16_bf16 {vr(V_S,16)}, {vr(V_K1F,4)}, {vr(V_Q1,4)}, {vr(V_NEGM,16)}
        v_mfma_f32_32x32x16_bf16 {vr(V_S,16)}, {vr(V_K2F,4)}, {vr(V_Q2,4)}, {vr(V_S,16)}
        s_nop 15
        s_nop 3""")
        for i in range(16):
            a(f"v_exp_f32 v{V_S+i}, v{V_S+i}")
        a("s_nop 0")
        for i in range(8):
            a(f"v_cvt_pk_bf16_f32 v{V_P+i}, v{V_S+2*i}, v{V_S+2*i+1}")
        a(f"""s_nop 1
        v_mfma_f32_32x32x16_bf16 {vr(V_O,16)}, {vr(V_VF,4)}, {vr(V_P,4)}, {vr(V_O,16)}
        v_mfma_f32_32x32x16_bf16 {vr(V_O,16)}, {vr(V_VF+4,4)}, {vr(V_P+4,4)}, {vr(V_O,16)}""")
    a(f"""v_add_u32 v{T+4}, 5120, v{T+4}
    v_add_u32 v{T+5}, 5120, v{T+5}
    v_add_u32 v{T+6}, 5120, v{T+6}
    s_add_u32 s38, s38, 1
    s_cmp_lt_u32 s38, 32
    s_cbranch_scc1 L_{name}_rl
    s_nop 15
    s_nop 3""")
    a.label(f"L_{name}_fin")
    a(f"""v_mov_b32 v{T}, v{V_O+8}
    v_mov_b32 v{T+1}, v{V_O+8}
    s_nop 1
    v_permlane32_swap_b32 v{T}, v{T+1}
    s_nop 1
    v_rcp_f32 v{T+1}, v{T+1}
    s_nop 0""")
    for i in range(12):
        a(f"v_mul_f32 v{V_O+i}, v{V_O+i}, v{T+1}")
    for i in range(6):
        a(f"v_cvt_pk_bf16_f32 v{V_O+i}, v{V_O+2*i}, v{V_O+2*i+1}")
    a(f"""s_lshl_b32 s30, s25, 8
    s_lshl_b32 s31, s20, 5
    s_add_u32 s30, s30, s31
    v_and_b32 v{T}, 31, v{V_LANE}
    v_add_u32 v{T}, s30, v{T}
    v_mul_u32_u24 v{T}, 1280, v{T}
    v_lshrrev_b32 v{T+1}, 5, v{V_LANE}
    v_lshl_add_u32 v{T}, v{T+1}, 3, v{T}
    s_mul_i32 s31, s24, 40
    s_add_u32 s31, s31, {O_OFF}
    buffer_store_dwordx2 {vr(V_O,2)}, v{T}, s[{S_WS}:{S_WS+3}], s31 offen
    buffer_store_dwordx2 {vr(V_O+2,2)}, v{T}, s[{S_WS}:{S_WS+3}], s31 offen offset:16
    s_mov_b64 exec, 0xffffffff
    buffer_store_dwordx2 {vr(V_O+4,2)}, v{T}, s[{S_WS}:{S_WS+3}], s31 offen offset:32
    s_mov_b64 exec, -1""")
    a.label(f"L_{name}_end")
    a("s_endpgm")
    return a.text(), 144
```

```python
from asmlib import *

QS_OFF = 0
KV_OFF = 0x400000
KV_HEAD = 163840
O_OFF = 0xA00000
WS_BYTES = 268435456
CSCALE = 0.3225994
import math
CSCALE = math.log2(math.e) / math.sqrt(20.0)

def f32hex(x):
    import struct
    return "0x%08x" % struct.unpack("<I", struct.pack("<f", x))[0]

def gemm_kernel(name, kind):
    a = Asm()
    NT = 15 if kind == "qkv" else 5
    NWG = 16 * NT
    WSTRIDE = 3840 if kind == "qkv" else 1280
    WBYTES = 640 * WSTRIDE
    NST = 10
    DEPTH = 3
    NBUF = 4
    V_LANE = 1
    V_XE, V_XO, V_W = 2, 3, 4
    V_XA = 8
    V_WB = 16
    V_T = 20
    V_XF = 32
    V_WF = 48
    V_ACC = 64
    S_X, S_W, S_WS = 12, 16, 44
    a.label(name)
    a(f"""s_cmp_ge_u32 s2, {NWG}
    s_cbranch_scc1 L_{name}_end
    s_load_dwordx4 s[4:7], s[0:1], 0
    s_load_dwordx4 s[8:11], s[0:1], 16
    s_load_dwordx2 s[26:27], s[0:1], 40
    v_and_b32 v{V_LANE}, 63, v0
    v_lshrrev_b32 v{V_T}, 6, v0
    s_nop 0
    v_readfirstlane_b32 s20, v{V_T}
    s_and_b32 s21, s2, 7
    s_lshr_b32 s22, s2, 3
    s_and_b32 s23, s22, 1
    s_lshl_b32 s21, s21, 1
    s_add_u32 s24, s21, s23
    s_lshr_b32 s25, s22, 1
    s_waitcnt lgkmcnt(0)""")
    if kind == "qkv":
        a(f"""s_mov_b32 s{S_X}, s4
        s_mov_b32 s{S_X+1}, s5
        s_mov_b32 s{S_X+2}, {2048*1280}
        s_mov_b32 s{S_X+3}, 0x00020000
        s_mov_b32 s{S_W}, s6
        s_mov_b32 s{S_W+1}, s7
        s_mov_b32 s{S_W+2}, {WBYTES}
        s_mov_b32 s{S_W+3}, 0x00020000""")
    else:
        a(f"""s_add_u32 s{S_X}, s26, {O_OFF}
        s_addc_u32 s{S_X+1}, s27, 0
        s_mov_b32 s{S_X+2}, {2048*1280}
        s_mov_b32 s{S_X+3}, 0x00020000
        s_mov_b32 s{S_W}, s8
        s_mov_b32 s{S_W+1}, s9
        s_mov_b32 s{S_W+2}, {WBYTES}
        s_mov_b32 s{S_W+3}, 0x00020000""")
    a(f"""s_mov_b32 s{S_WS}, s26
    s_mov_b32 s{S_WS+1}, s27
    s_mov_b32 s{S_WS+2}, {WS_BYTES}
    s_mov_b32 s{S_WS+3}, 0x00020000""")
    T = V_T
    a(f"""v_lshrrev_b32 v{T}, 3, v{V_LANE}
    v_mul_u32_u24 v{T}, 1280, v{T}
    v_and_b32 v{T+1}, 7, v{V_LANE}
    v_lshrrev_b32 v{T+2}, 4, v{V_LANE}
    v_xor_b32 v{T+1}, v{T+1}, v{T+2}
    v_lshlrev_b32 v{T+3}, 4, v{T+1}
    v_add_u32 v{V_XE}, v{T}, v{T+3}
    v_xor_b32 v{T+1}, 4, v{T+1}
    v_lshlrev_b32 v{T+3}, 4, v{T+1}
    v_add_u32 v{V_XO}, v{T}, v{T+3}""")
    a(f"""v_lshrrev_b32 v{T}, 4, v{V_LANE}
    v_mul_u32_u24 v{T+1}, {WSTRIDE}, v{T}
    v_and_b32 v{T+2}, 15, v{V_LANE}
    v_lshlrev_b32 v{T}, 2, v{T}
    v_xor_b32 v{T+2}, v{T+2}, v{T}
    v_lshlrev_b32 v{T+2}, 4, v{T+2}
    v_add_u32 v{V_W}, v{T+1}, v{T+2}""")
    a(f"""s_lshl_b32 s30, s24, 7
    s_lshl_b32 s32, s20, 5
    s_add_u32 s30, s30, s32
    s_mul_i32 s30, s30, 1280
    s_lshl_b32 s31, s20, 4
    s_mul_i32 s31, s31, {WSTRIDE}
    s_lshl_b32 s32, s25, 8
    s_add_u32 s31, s31, s32
    s_lshl_b32 s33, s20, 12
    s_lshl_b32 s34, s20, 12""")
    def dma_stage(st):
        b = st % NBUF
        for jj in range(4):
            vo = V_XE if jj % 2 == 0 else V_XO
            a(f"""s_add_u32 m0, s33, {b*32768 + jj*1024}
            s_add_u32 s35, s30, {jj*10240 + st*128}
            buffer_load_dwordx4 v{vo}, s[{S_X}:{S_X+3}], s35 offen lds""")
        for jj in range(4):
            a(f"""s_add_u32 m0, s34, {b*32768 + 16384 + jj*1024}
            s_add_u32 s35, s31, {(st*64 + jj*4)*WSTRIDE}
            buffer_load_dwordx4 v{V_W}, s[{S_W}:{S_W+3}], s35 offen lds""")
    for st in range(DEPTH):
        dma_stage(st)
    a(f"""v_and_b32 v{T}, 31, v{V_LANE}
    v_lshrrev_b32 v{T+1}, 5, v{V_LANE}
    v_lshrrev_b32 v{T+2}, 1, v{T}
    v_and_b32 v{T+2}, 7, v{T+2}
    v_xor_b32 v{T+2}, v{T+2}, v{T+1}
    v_lshlrev_b32 v{T+2}, 4, v{T+2}
    v_lshlrev_b32 v{T+3}, 7, v{T}
    v_add_u32 v{T+3}, v{T+3}, v{T+2}
    s_lshr_b32 s36, s20, 1
    s_lshl_b32 s36, s36, 13
    v_add_u32 v{T+3}, s36, v{T+3}""")
    for s_ in range(2):
        for kk in range(4):
            a(f"v_xor_b32 v{V_XA + s_*4 + kk}, {32*kk}, v{T+3}")
            if s_ == 1:
                a(f"v_add_u32 v{V_XA + s_*4 + kk}, 0x10000, v{V_XA + s_*4 + kk}")
    a(f"""v_lshrrev_b32 v{T}, 4, v{V_LANE}
    v_and_b32 v{T+1}, 15, v{V_LANE}
    v_lshrrev_b32 v{T+2}, 2, v{T+1}
    v_and_b32 v{T+3}, 3, v{T+1}
    v_lshrrev_b32 v{T+4}, 1, v{T}
    v_lshlrev_b32 v{T+4}, 3, v{T+4}
    v_add_u32 v{T+4}, v{T+4}, v{T+2}
    v_lshlrev_b32 v{T+4}, 8, v{T+4}
    v_and_b32 v{T+5}, 1, v{T}
    v_lshlrev_b32 v{T+5}, 1, v{T+5}
    v_lshrrev_b32 v{T+6}, 1, v{T+3}
    v_add_u32 v{T+5}, v{T+5}, v{T+6}
    v_lshlrev_b32 v{T+6}, 2, v{T+2}
    v_xor_b32 v{T+5}, v{T+5}, v{T+6}
    v_lshlrev_b32 v{T+5}, 4, v{T+5}
    v_add_u32 v{T+4}, v{T+4}, v{T+5}
    v_and_b32 v{T+5}, 1, v{T+3}
    v_lshlrev_b32 v{T+5}, 3, v{T+5}
    v_add_u32 v{T+4}, v{T+4}, v{T+5}
    s_and_b32 s36, s20, 1
    s_lshl_b32 s36, s36, 7""")
    for s_ in range(2):
        for bb in range(2):
            a(f"""v_xor_b32 v{V_WB + s_*2 + bb}, s36, v{T+4}""")
            if bb:
                a(f"v_xor_b32 v{V_WB + s_*2 + bb}, 64, v{V_WB + s_*2 + bb}")
            if s_ == 1:
                a(f"v_add_u32 v{V_WB + s_*2 + bb}, 0x10000, v{V_WB + s_*2 + bb}")
    for i in range(64):
        a(f"v_mov_b32 v{V_ACC+i}, 0")
    def reads(st, kk):
        b = st % NBUF
        sset = b // 2
        boff = (b % 2) * 32768
        par = kk % 2
        for sub in range(2):
            a(f"ds_read_b128 {vr(V_XF + par*8 + sub*4, 4)}, v{V_XA + sset*4 + kk}{ds_off(boff + sub*4096)}")
        for sub in range(2):
            for q in range(2):
                a(f"ds_read_b64_tr_b16 {vr(V_WF + par*8 + sub*4 + q*2, 2)}, v{V_WB + sset*2 + sub}{ds_off(boff + 16384 + kk*4096 + q*1024)}")
    def mfmas(kk, vtype):
        par = kk % 2
        for i in range(2):
            for j in range(2):
                acc = vr(V_ACC + (i*2 + j)*16, 16)
                if vtype:
                    A = vr(V_XF + par*8 + i*4, 4); B = vr(V_WF + par*8 + j*4, 4)
                else:
                    A = vr(V_WF + par*8 + i*4, 4); B = vr(V_XF + par*8 + j*4, 4)
                a(f"v_mfma_f32_32x32x16_bf16 {acc}, {A}, {B}, {acc}")
    def mainloop(vtype):
        for st in range(NST):
            inflight = min(NST - 1, st + DEPTH - 1) - st
            a(f"s_waitcnt vmcnt({8*inflight})")
            a("s_barrier")
            reads(st, 0)
            if st + DEPTH < NST:
                dma_stage(st + DEPTH)
            for kk in range(4):
                if kk < 3:
                    reads(st, kk + 1)
                    a("s_waitcnt lgkmcnt(6)")
                else:
                    a("s_waitcnt lgkmcnt(0)")
                mfmas(kk, vtype)
    if kind == "qkv":
        a(f"""s_cmp_ge_u32 s25, 10
        s_cbranch_scc1 L_{name}_v""")
        mainloop(False)
        a("s_nop 15\ns_nop 15")
        epilogue_qk(a, name, V_LANE, V_T, V_ACC, S_WS)
        a(f"s_branch L_{name}_end")
        a.label(f"L_{name}_v")
        mainloop(True)
        a("s_nop 15\ns_nop 15")
        epilogue_v(a, name, V_LANE, V_T, V_ACC, S_WS)
    else:
        mainloop(False)
        a("s_nop 15\ns_nop 15")
        epilogue_out(a, name, V_LANE, V_T, V_ACC)
    a.label(f"L_{name}_end")
    a("s_endpgm")
    return a.text(), 128

def div20(a, vN, vhd, vd, vt):
    a(f"""v_mul_u32_u24 v{vhd}, 52429, v{vN}
    v_lshrrev_b32 v{vhd}, 20, v{vhd}
    v_mul_u32_u24 v{vt}, 20, v{vhd}
    v_sub_u32 v{vd}, v{vN}, v{vt}""")

def epilogue_qk(a, name, V_LANE, T, V_ACC, S_WS):
    a(f"""s_lshr_b32 s36, s20, 1
    s_lshl_b32 s36, s36, 6
    s_lshl_b32 s37, s24, 7
    s_add_u32 s36, s36, s37
    v_and_b32 v{T}, 31, v{V_LANE}
    v_add_u32 v{T}, s36, v{T}
    v_lshrrev_b32 v{T+1}, 5, v{V_LANE}
    v_lshlrev_b32 v{T+1}, 2, v{T+1}
    s_and_b32 s36, s20, 1
    s_lshl_b32 s36, s36, 6
    s_lshl_b32 s37, s25, 7
    s_add_u32 s36, s36, s37
    s_cmp_ge_u32 s25, 5
    s_cbranch_scc1 L_{name}_kpart""")
    for bs in range(2):
        a(f"""v_add_u32 v{T+2+bs}, {32*bs}, v{T}
        v_mul_u32_u24 v{T+2+bs}, 40, v{T+2+bs}""")
    for an in range(2):
        for g in range(4):
            a(f"""s_add_u32 s37, s36, {32*an + 8*g}
            v_add_u32 v{T+4}, s37, v{T+1}""")
            div20(a, T+4, T+5, T+6, T+7)
            a(f"""v_mul_u32_u24 v{T+5}, {2048*40}, v{T+5}
            v_lshl_add_u32 v{T+5}, v{T+6}, 1, v{T+5}""")
            for bs in range(2):
                r = V_ACC + (an*2 + bs)*16 + 4*g
                a(f"""v_mul_f32 v{r}, {f32hex(CSCALE)}, v{r}
                v_mul_f32 v{r+1}, {f32hex(CSCALE)}, v{r+1}
                v_mul_f32 v{r+2}, {f32hex(CSCALE)}, v{r+2}
                v_mul_f32 v{r+3}, {f32hex(CSCALE)}, v{r+3}
                v_cvt_pk_bf16_f32 v{r}, v{r}, v{r+1}
                v_cvt_pk_bf16_f32 v{r+1}, v{r+2}, v{r+3}
                v_add_u32 v{T+7}, v{T+5}, v{T+2+bs}
                buffer_store_dwordx2 {vr(r,2)}, v{T+7}, s[{S_WS}:{S_WS+3}], 0 offen""")
    a(f"s_branch L_{name}_qkdone")
    a.label(f"L_{name}_kpart")
    a(f"s_sub_u32 s36, s36, 640")
    for bs in range(2):
        a(f"""v_add_u32 v{T+4}, {32*bs}, v{T}
        v_lshrrev_b32 v{T+5}, 6, v{T+4}
        v_mul_u32_u24 v{T+5}, 5120, v{T+5}
        v_bfe_u32 v{T+6}, v{T+4}, 5, 1
        v_and_b32 v{T+7}, 31, v{T+4}
        v_lshlrev_b32 v{T+8}, 10, v{T+6}
        v_add_u32 v{T+8}, v{T+8}, v{T+5}
        v_lshl_add_u32 v{T+2+bs}, v{T+7}, 4, v{T+8}
        v_lshlrev_b32 v{T+8}, 8, v{T+6}
        v_add_u32 v{T+8}, v{T+8}, v{T+5}
        v_lshl_add_u32 v{T+8}, v{T+7}, 3, v{T+8}
        v_add_u32 v{T+10+bs}, 2048, v{T+8}""")
    for an in range(2):
        for g in range(4):
            a(f"""s_add_u32 s37, s36, {32*an + 8*g}
            v_add_u32 v{T+4}, s37, v{T+1}""")
            div20(a, T+4, T+5, T+6, T+7)
            a(f"""v_mul_u32_u24 v{T+5}, {KV_HEAD}, v{T+5}
            v_add_u32 v{T+5}, {KV_OFF}, v{T+5}
            v_lshrrev_b32 v{T+7}, 3, v{T+6}
            v_lshlrev_b32 v{T+7}, 9, v{T+7}
            v_and_b32 v{T+8}, 7, v{T+6}
            v_lshl_add_u32 v{T+7}, v{T+8}, 1, v{T+7}
            v_cmp_gt_u32 vcc, 16, v{T+6}
            s_nop 1""")
            for bs in range(2):
                r = V_ACC + (an*2 + bs)*16 + 4*g
                a(f"""v_add_u32 v{T+8}, v{T+7}, v{T+2+bs}
                v_cndmask_b32 v{T+8}, v{T+10+bs}, v{T+8}, vcc
                v_add_u32 v{T+8}, v{T+8}, v{T+5}
                v_cvt_pk_bf16_f32 v{r}, v{r}, v{r+1}
                v_cvt_pk_bf16_f32 v{r+1}, v{r+2}, v{r+3}
                buffer_store_dwordx2 {vr(r,2)}, v{T+8}, s[{S_WS}:{S_WS+3}], 0 offen""")
    a.label(f"L_{name}_qkdone")

def epilogue_v(a, name, V_LANE, T, V_ACC, S_WS):
    a(f"""s_and_b32 s36, s20, 1
    s_lshl_b32 s36, s36, 6
    s_lshl_b32 s37, s25, 7
    s_add_u32 s36, s36, s37
    s_sub_u32 s36, s36, 1280
    v_and_b32 v{T}, 31, v{V_LANE}
    v_add_u32 v{T}, s36, v{T}
    v_lshrrev_b32 v{T+1}, 5, v{V_LANE}
    v_mul_u32_u24 v{T+1}, 320, v{T+1}
    s_lshr_b32 s36, s20, 1
    s_lshl_b32 s37, s24, 1
    s_add_u32 s36, s36, s37
    s_mul_i32 s36, s36, 5120
    s_add_u32 s36, s36, 2560""")
    for bn in range(2):
        a(f"v_add_u32 v{T+4}, {32*bn}, v{T}")
        div20(a, T+4, T+5, T+6, T+7)
        a(f"""v_mul_u32_u24 v{T+5}, {KV_HEAD}, v{T+5}
        v_lshl_add_u32 v{T+5}, v{T+6}, 4, v{T+5}
        v_add_u32 v{T+5}, v{T+5}, v{T+1}
        v_add_u32 v{T+2+bn}, {KV_OFF}, v{T+5}""")
    for as_ in range(2):
        for bn in range(2):
            for g in range(4):
                r = V_ACC + (as_*2 + bn)*16 + 4*g
                off = as_*1280 + (g >> 1)*640 + (g & 1)*8
                a(f"""v_cvt_pk_bf16_f32 v{r}, v{r}, v{r+1}
                v_cvt_pk_bf16_f32 v{r+1}, v{r+2}, v{r+3}
                buffer_store_dwordx2 {vr(r,2)}, v{T+2+bn}, s[{S_WS}:{S_WS+3}], s36 offen{buf_off(off)}""")

def epilogue_out(a, name, V_LANE, T, V_ACC):
    a(f"""s_mov_b32 s40, s10
    s_mov_b32 s41, s11
    s_mov_b32 s42, {2048*1280}
    s_mov_b32 s43, 0x00020000
    s_lshr_b32 s36, s20, 1
    s_lshl_b32 s36, s36, 6
    s_lshl_b32 s37, s24, 7
    s_add_u32 s36, s36, s37
    v_and_b32 v{T}, 31, v{V_LANE}
    v_add_u32 v{T}, s36, v{T}
    v_lshrrev_b32 v{T+1}, 5, v{V_LANE}
    v_lshlrev_b32 v{T+1}, 3, v{T+1}
    s_and_b32 s36, s20, 1
    s_lshl_b32 s36, s36, 7
    s_lshl_b32 s37, s25, 8
    s_add_u32 s36, s36, s37""")
    for bs in range(2):
        a(f"""v_add_u32 v{T+2+bs}, {32*bs}, v{T}
        v_mul_u32_u24 v{T+2+bs}, 1280, v{T+2+bs}
        v_add_u32 v{T+2+bs}, v{T+2+bs}, v{T+1}""")
    for an in range(2):
        for bs in range(2):
            for g in range(4):
                r = V_ACC + (an*2 + bs)*16 + 4*g
                off = (32*an + 8*g)*2
                a(f"""v_cvt_pk_bf16_f32 v{r}, v{r}, v{r+1}
                v_cvt_pk_bf16_f32 v{r+1}, v{r+2}, v{r+3}
                buffer_store_dwordx2 {vr(r,2)}, v{T+2+bs}, s[40:43], s36 offen{buf_off(off)}""")
```

```python
import sys
from asmlib import *
from gemm import gemm_kernel
from attn import attn_kernel
def build():
    hdr = """; MHA block (B=1,S=2048,D=640,H=32,Dh=20) -- three launches: qkv projection, attention, output projection.
; @launch kernel=mha_qkv_kernel grid=(240,1,1) block=(256,1,1) lds=131072
; @launch kernel=mha_attn_kernel grid=(256,1,1) block=(512,1,1) lds=163840
; @launch kernel=mha_oproj_kernel grid=(80,1,1) block=(256,1,1) lds=131072
.amdgcn_target "amdgcn-amd-amdhsa--gfx950"
.text
"""
    out = hdr
    kds = []
    for name, fn in (("mha_qkv_kernel", lambda n: gemm_kernel(n, "qkv")),
                     ("mha_attn_kernel", attn_kernel),
                     ("mha_oproj_kernel", lambda n: gemm_kernel(n, "oproj"))):
        txt, nv = fn(name)
        out += f".globl {name}\n.p2align 8\n.type {name},@function\n" + txt
        kds.append(kd(name, nv))
    out += '.section .rodata,"a"\n' + "".join(kds)
    return out
if __name__ == "__main__":
    import asmlib
    if len(sys.argv) > 2 and sys.argv[2] == "prof":
        asmlib.PROF = True
    open(sys.argv[1], "w").write(build())
```

```python
class Asm:
    def __init__(self):
        self.lines = []
    def __call__(self, s):
        for l in s.split("\n"):
            l = l.strip()
            if l:
                self.lines.append("    " + l)
    def label(self, name):
        self.lines.append(name + ":")
    def comment(self, s):
        self.lines.append("    ; " + s)
    def raw(self, s):
        self.lines.append(s)
    def text(self):
        return "\n".join(self.lines) + "\n"

def vr(base, n):
    if n == 1:
        return f"v{base}"
    return f"v[{base}:{base+n-1}]"
def sr(base, n):
    if n == 1:
        return f"s{base}"
    return f"s[{base}:{base+n-1}]"

def kd(name, nvgpr, nsgpr=96, lds_static=0):
    nv = (nvgpr + 7) // 8 * 8
    return f""".p2align 6
.amdhsa_kernel {name}
  .amdhsa_next_free_vgpr {nv}
  .amdhsa_next_free_sgpr {nsgpr}
  .amdhsa_accum_offset {nv}
  .amdhsa_group_segment_fixed_size {lds_static}
  .amdhsa_kernarg_size 48
  .amdhsa_user_sgpr_count 2
  .amdhsa_user_sgpr_kernarg_segment_ptr 1
  .amdhsa_system_sgpr_workgroup_id_x 1
.end_amdhsa_kernel
"""

def buf_off(o):
    assert 0 <= o <= 4095, o
    return f" offset:{o}" if o else ""
def ds_off(o):
    assert 0 <= o <= 65535, o
    return f" offset:{o}" if o else ""

PROF = False
PROF_OFF = 0xC00000
def stamp(a, idx):
    if PROF:
        a(f"s_memtime s[{60+2*idx}:{61+2*idx}]")
        if idx == 0:
            a("s_memrealtime s[88:89]")
def stamp_dump(a, n, S_WS, waves_per_wg, vtmp):
    if not PROF: return
    a("s_memrealtime s[90:91]")
    a("s_waitcnt lgkmcnt(0)")
    a(f"""s_mul_i32 s58, s2, {waves_per_wg}
    s_add_u32 s58, s58, s20
    s_lshl_b32 s58, s58, 7
    s_add_u32 s58, s58, {PROF_OFF}
    s_mov_b64 exec, 1""")
    for i in range(n):
        a(f"""v_mov_b32 v{vtmp}, s{60+2*i}
        v_mov_b32 v{vtmp+1}, s{61+2*i}
        v_mov_b32 v{vtmp+2}, {8*i}
        buffer_store_dwordx2 v[{vtmp}:{vtmp+1}], v{vtmp+2}, s[{S_WS}:{S_WS+3}], s58 offen
        s_waitcnt vmcnt(0)""")
    a(f"""v_mov_b32 v{vtmp}, s88
    v_mov_b32 v{vtmp+1}, s90
    v_mov_b32 v{vtmp+2}, 120
    buffer_store_dwordx2 v[{vtmp}:{vtmp+1}], v{vtmp+2}, s[{S_WS}:{S_WS+3}], s58 offen
    s_waitcnt vmcnt(0)""")
    a("s_mov_b64 exec, -1")
```

```python
from asmlib import *
import asmlib
from gemm import QS_OFF, KV_OFF, KV_HEAD, O_OFF, WS_BYTES, f32hex

def attn_kernel(name):
    a = Asm()
    V_LANE = 1
    V_Q1, V_Q2 = 4, 8
    V_NEGM = 12
    V_S = 28
    V_P = 60
    V_O = 76
    V_K1F = 92
    V_K2F = 100
    V_VF = 108
    V_AK1, V_AK2, V_AV = 124, 127, 130
    T = 134
    NVGPR = 152
    S_WS = 44
    NT = 64
    SETSZ = 61440
    NDMA = 20
    PRE_DMA = 3
    a.label(name)
    a(f"""s_cmp_ge_u32 s2, 256
    s_cbranch_scc1 L_{name}_end
    s_load_dwordx2 s[26:27], s[0:1], 40
    v_and_b32 v{V_LANE}, 63, v0
    v_lshrrev_b32 v{T}, 6, v0
    s_nop 0
    v_readfirstlane_b32 s20, v{T}
    s_and_b32 s21, s2, 7
    s_lshl_b32 s21, s21, 2
    s_lshr_b32 s22, s2, 3
    s_and_b32 s23, s22, 3
    s_add_u32 s24, s21, s23
    s_lshr_b32 s25, s2, 5
    s_waitcnt lgkmcnt(0)
    s_mov_b32 s{S_WS}, s26
    s_mov_b32 s{S_WS+1}, s27
    s_mov_b32 s{S_WS+2}, {WS_BYTES}
    s_mov_b32 s{S_WS+3}, 0x00020000""")
    asmlib.stamp(a, 0)
    a(f"""s_mul_i32 s31, s24, {KV_HEAD}
    s_add_u32 s31, s31, {KV_OFF}
    s_lshl_b32 s32, s20, 10
    s_add_u32 s31, s31, s32
    v_lshlrev_b32 v{T+2}, 4, v{V_LANE}""")
    dma_issued = [0]
    def dma(cnt=1):
        for _ in range(cnt):
            p = dma_issued[0]
            if p >= NDMA: return
            a(f"""s_add_u32 m0, s32, {p*8192}
            s_add_u32 s33, s31, {p*8192}
            buffer_load_dwordx4 v{T+2}, s[{S_WS}:{S_WS+3}], s33 offen lds""")
            dma_issued[0] += 1
    dma(2)
    a(f"""s_lshl_b32 s30, s24, 11
    s_lshl_b32 s38, s25, 8
    s_add_u32 s30, s30, s38
    s_lshl_b32 s38, s20, 5
    s_add_u32 s30, s30, s38
    s_mul_i32 s30, s30, 40
    v_and_b32 v{T}, 31, v{V_LANE}
    v_mul_u32_u24 v{T}, 40, v{T}
    v_lshrrev_b32 v{T+1}, 5, v{V_LANE}
    v_lshl_add_u32 v{T+1}, v{T+1}, 4, v{T}
    v_mov_b32 v{V_Q2}, 0
    v_mov_b32 v{V_Q2+1}, 0
    v_mov_b32 v{V_Q2+2}, 0
    v_mov_b32 v{V_Q2+3}, 0
    buffer_load_dwordx4 {vr(V_Q1,4)}, v{T+1}, s[{S_WS}:{S_WS+3}], s30 offen
    s_mov_b64 exec, 0xffffffff
    buffer_load_dwordx2 {vr(V_Q2,2)}, v{T}, s[{S_WS}:{S_WS+3}], s30 offen offset:32
    s_mov_b64 exec, -1""")
    dma(PRE_DMA - 2)
    asmlib.stamp(a, 1)
    a(f"""v_lshlrev_b32 v{V_AK1}, 4, v{V_LANE}
    v_and_b32 v{T}, 31, v{V_LANE}
    v_lshlrev_b32 v{V_AK2}, 3, v{T}
    v_add_u32 v{V_AK2}, 2048, v{V_AK2}
    v_lshrrev_b32 v{T+1}, 5, v{V_LANE}
    v_mul_u32_u24 v{T+1}, 320, v{T+1}
    v_lshl_add_u32 v{V_AV}, v{T}, 4, v{T+1}
    v_add_u32 v{V_AV}, 2560, v{V_AV}""")
    for s_ in (1, 2):
        a(f"""v_add_u32 v{V_AK1+s_}, {SETSZ*s_}, v{V_AK1}
        v_add_u32 v{V_AK2+s_}, {SETSZ*s_}, v{V_AK2}
        v_add_u32 v{V_AV+s_}, {SETSZ*s_}, v{V_AV}""")
    a(f"""s_mov_b32 s34, 0x000fffff
    s_mov_b32 s35, 0x000fffff""")
    for b in range(2):
        a(f"""v_mov_b32 v{V_K2F+b*4+2}, 0
        v_mov_b32 v{V_K2F+b*4+3}, 0""")
    a(f"""v_cmp_eq_u32 vcc, 20, v{T}
    v_mov_b32 v{T+3}, 0
    v_mov_b32 v{T+4}, 0x3f803f80
    s_nop 0
    v_cndmask_b32 v{T+3}, v{T+3}, v{T+4}, vcc""")
    for i in range(16):
        a(f"v_mov_b32 v{V_VF+i}, v{T+3}")
    for i in range(16):
        a(f"v_mov_b32 v{V_NEGM+i}, 0")
        a(f"v_mov_b32 v{V_O+i}, 0")

    def lds(t, what, j=0):
        blk, e = t // 2, t % 2
        if what == "k1":
            off = blk*5120 + e*1024; base = V_AK1
        elif what == "k2":
            off = blk*5120 + e*256; base = V_AK2
        else:
            off = blk*5120 + e*1280 + j*640; base = V_AV
        s_ = off // SETSZ
        return f"v{base+s_}{ds_off(off - s_*SETSZ)}"
    def RK(t):
        b = t % 2
        a(f"ds_read_b128 {vr(V_K1F+b*4,4)}, {lds(t,'k1')}")
        a(f"ds_read_b64 {vr(V_K2F+b*4,2)}, {lds(t,'k2')}")
    def RV(t):
        b = t % 2
        a("s_mov_b64 exec, s[34:35]")
        a(f"ds_read_b128 {vr(V_VF+b*8,4)}, {lds(t,'v',0)}")
        a(f"ds_read_b128 {vr(V_VF+b*8+4,4)}, {lds(t,'v',1)}")
        a("s_mov_b64 exec, -1")
    def SM1(t, cbase):
        b = t % 2
        a(f"v_mfma_f32_32x32x16_bf16 {vr(V_S+b*16,16)}, {vr(V_K1F+b*4,4)}, {vr(V_Q1,4)}, {vr(cbase,16)}")
    def SM2(t):
        b = t % 2
        S = vr(V_S + b*16, 16)
        a(f"v_mfma_f32_32x32x16_bf16 {S}, {vr(V_K2F+b*4,4)}, {vr(V_Q2,4)}, {S}")
    def PVj(t, j):
        b = t % 2
        O = vr(V_O, 16)
        a(f"v_mfma_f32_32x32x16_bf16 {O}, {vr(V_VF+b*8+4*j,4)}, {vr(V_P+b*8+4*j,4)}, {O}")
    def chunk_sync(c):
        n = min(-(-10*(c+1) // 8), NDMA)
        assert dma_issued[0] >= n, (c, n, dma_issued[0])
        a(f"s_waitcnt vmcnt({dma_issued[0]-n})")
        a("s_barrier")

    chunk_sync(0)
    asmlib.stamp(a, 2)
    RK(0); RK(1)
    a("s_waitcnt lgkmcnt(0)")
    SM1(0, V_NEGM); SM2(0); SM1(1, V_NEGM); SM2(1)
    a("s_nop 15")
    a(f"v_max3_f32 v{T}, v{V_S}, v{V_S+1}, v{V_S+2}")
    for i in range(3, 31, 2):
        a(f"v_max3_f32 v{T}, v{T}, v{V_S+i}, v{V_S+i+1}")
    a(f"v_max_f32 v{T}, v{T}, v{V_S+31}")
    a(f"""v_mov_b32 v{T+1}, v{T}
    s_nop 1
    v_permlane32_swap_b32 v{T}, v{T+1}
    s_nop 1
    v_max_f32 v{T}, v{T}, v{T+1}
    v_sub_f32 v{T}, 0, v{T}""")
    for i in range(16):
        a(f"v_mov_b32 v{V_NEGM+i}, v{T}")
    a("s_nop 1")
    SM1(0, V_NEGM); SM2(0)
    RV(0)
    for i in range(NT + 1):
        if i % 8 == 0 and i < NT:
            asmlib.stamp(a, 3 + i//8)
        b = i % 2
        ve = [f"v_exp_f32 v{V_S+b*16+k}, v{V_S+b*16+k}" for k in range(16)] if i < NT else []
        vc = [f"v_cvt_pk_bf16_f32 v{V_P+b*8+k}, v{V_S+b*16+2*k}, v{V_S+b*16+2*k+1}" for k in range(8)] if i < NT else []
        if i + 1 < NT and i >= 1:
            a("s_waitcnt lgkmcnt(2)")
        for k in range(4):
            if ve: a(ve[k])
        if i + 1 < NT:
            SM1(i+1, V_NEGM)
        for k in range(4, 8):
            if ve: a(ve[k])
        if i >= 1:
            if i + 1 < NT and i >= 1: pass
            PVj(i-1, 0)
        for k in range(8, 12):
            if ve: a(ve[k])
        if i + 1 < NT:
            SM2(i+1)
        for k in range(12, 16):
            if ve: a(ve[k])
        if i >= 1:
            PVj(i-1, 1)
        if i + 2 < NT:
            if (i + 2) % 4 == 0:
                chunk_sync((i + 2) // 4)
            RK(i+2)
        if i + 1 < NT:
            RV(i+1)
        if i % 2 == 1:
            dma(1)
        for c in vc: a(c)
        if i < NT:
            if i + 2 < NT:
                a("s_waitcnt lgkmcnt(4)")
            elif i + 1 < NT:
                a("s_waitcnt lgkmcnt(2)")
            else:
                a("s_waitcnt lgkmcnt(0)")
            a("s_nop 0")
    a(f"""s_nop 15
    s_nop 3
    v_mov_b32 v{T}, 0x5f800000
    v_cmp_nlt_f32 vcc, v{V_O+8}, v{T}
    s_mov_b32 s36, 0
    s_mov_b32 s37, -1
    s_and_b64 s[36:37], s[36:37], vcc
    s_cmp_eq_u64 s[36:37], 0
    s_cbranch_scc1 L_{name}_fin""")
    for i in range(16):
        a(f"v_mov_b32 v{V_O+i}, 0")
    a(f"""v_mov_b32 v{T+2}, 0xff800000
    v_mov_b32 v{T+4}, v{V_AK1}
    v_mov_b32 v{T+5}, v{V_AK2}
    s_mov_b32 s38, 0""")
    a.label(f"L_{name}_mx")
    for e in range(2):
        a(f"""ds_read_b128 {vr(V_K1F,4)}, v{T+4}{ds_off(e*1024)}
        ds_read_b64 {vr(V_K2F,2)}, v{T+5}{ds_off(e*256)}
        s_waitcnt lgkmcnt(0)
        v_mfma_f32_32x32x16_bf16 {vr(V_S,16)}, {vr(V_K1F,4)}, {vr(V_Q1,4)}, {vr(V_O,16)}
        v_mfma_f32_32x32x16_bf16 {vr(V_S,16)}, {vr(V_K2F,4)}, {vr(V_Q2,4)}, {vr(V_S,16)}
        s_nop 15
        s_nop 3""")
        for i in range(0, 16, 2):
            a(f"v_max3_f32 v{T+2}, v{T+2}, v{V_S+i}, v{V_S+i+1}")
    a(f"""v_add_u32 v{T+4}, 5120, v{T+4}
    v_add_u32 v{T+5}, 5120, v{T+5}
    s_add_u32 s38, s38, 1
    s_cmp_lt_u32 s38, 32
    s_cbranch_scc1 L_{name}_mx
    v_mov_b32 v{T+3}, v{T+2}
    s_nop 1
    v_permlane32_swap_b32 v{T+2}, v{T+3}
    s_nop 1
    v_max_f32 v{T+2}, v{T+2}, v{T+3}
    v_sub_f32 v{T+2}, 0, v{T+2}""")
    for i in range(16):
        a(f"v_mov_b32 v{V_NEGM+i}, v{T+2}")
    a(f"""v_mov_b32 v{T+4}, v{V_AK1}
    v_mov_b32 v{T+5}, v{V_AK2}
    v_mov_b32 v{T+6}, v{V_AV}
    s_mov_b32 s38, 0""")
    a.label(f"L_{name}_rl")
    for e in range(2):
        a(f"""ds_read_b128 {vr(V_K1F,4)}, v{T+4}{ds_off(e*1024)}
        ds_read_b64 {vr(V_K2F,2)}, v{T+5}{ds_off(e*256)}
        s_mov_b64 exec, s[34:35]
        ds_read_b128 {vr(V_VF,4)}, v{T+6}{ds_off(e*1280)}
        ds_read_b128 {vr(V_VF+4,4)}, v{T+6}{ds_off(e*1280+640)}
        s_mov_b64 exec, -1
        s_waitcnt lgkmcnt(0)
        v_mfma_f32_32x32x16_bf16 {vr(V_S,16)}, {vr(V_K1F,4)}, {vr(V_Q1,4)}, {vr(V_NEGM,16)}
        v_mfma_f32_32x32x16_bf16 {vr(V_S,16)}, {vr(V_K2F,4)}, {vr(V_Q2,4)}, {vr(V_S,16)}
        s_nop 15
        s_nop 3""")
        for i in range(16):
            a(f"v_exp_f32 v{V_S+i}, v{V_S+i}")
        a("s_nop 0")
        for i in range(8):
            a(f"v_cvt_pk_bf16_f32 v{V_P+i}, v{V_S+2*i}, v{V_S+2*i+1}")
        a(f"""s_nop 1
        v_mfma_f32_32x32x16_bf16 {vr(V_O,16)}, {vr(V_VF,4)}, {vr(V_P,4)}, {vr(V_O,16)}
        v_mfma_f32_32x32x16_bf16 {vr(V_O,16)}, {vr(V_VF+4,4)}, {vr(V_P+4,4)}, {vr(V_O,16)}""")
    a(f"""v_add_u32 v{T+4}, 5120, v{T+4}
    v_add_u32 v{T+5}, 5120, v{T+5}
    v_add_u32 v{T+6}, 5120, v{T+6}
    s_add_u32 s38, s38, 1
    s_cmp_lt_u32 s38, 32
    s_cbranch_scc1 L_{name}_rl
    s_nop 15
    s_nop 3""")
    a.label(f"L_{name}_fin")
    a(f"""v_mov_b32 v{T}, v{V_O+8}
    v_mov_b32 v{T+1}, v{V_O+8}
    s_nop 1
    v_permlane32_swap_b32 v{T}, v{T+1}
    s_nop 1
    v_rcp_f32 v{T+1}, v{T+1}
    s_nop 0""")
    for i in range(12):
        a(f"v_mul_f32 v{V_O+i}, v{V_O+i}, v{T+1}")
    for i in range(6):
        a(f"v_cvt_pk_bf16_f32 v{V_O+i}, v{V_O+2*i}, v{V_O+2*i+1}")
    a(f"""s_lshl_b32 s30, s25, 8
    s_lshl_b32 s31, s20, 5
    s_add_u32 s30, s30, s31
    v_and_b32 v{T}, 31, v{V_LANE}
    v_add_u32 v{T}, s30, v{T}
    v_mul_u32_u24 v{T}, 1280, v{T}
    v_lshrrev_b32 v{T+1}, 5, v{V_LANE}
    v_lshl_add_u32 v{T}, v{T+1}, 3, v{T}
    s_mul_i32 s31, s24, 40
    s_add_u32 s31, s31, {O_OFF}
    buffer_store_dwordx2 {vr(V_O,2)}, v{T}, s[{S_WS}:{S_WS+3}], s31 offen
    buffer_store_dwordx2 {vr(V_O+2,2)}, v{T}, s[{S_WS}:{S_WS+3}], s31 offen offset:16
    s_mov_b64 exec, 0xffffffff
    buffer_store_dwordx2 {vr(V_O+4,2)}, v{T}, s[{S_WS}:{S_WS+3}], s31 offen offset:32
    s_mov_b64 exec, -1""")
    if asmlib.PROF:
        a("s_waitcnt vmcnt(0)")
        asmlib.stamp(a, 11)
        asmlib.stamp_dump(a, 12, S_WS, 8, T)
    a.label(f"L_{name}_end")
    a("s_endpgm")
    return a.text(), NVGPR
```

```python
from asmlib import *
import asmlib

QS_OFF = 0
KV_OFF = 0x400000
KV_HEAD = 163840
O_OFF = 0xA00000
WS_BYTES = 268435456
CSCALE = 0.3225994
import math
CSCALE = math.log2(math.e) / math.sqrt(20.0)

def f32hex(x):
    import struct
    return "0x%08x" % struct.unpack("<I", struct.pack("<f", x))[0]

def gemm_kernel(name, kind):
    a = Asm()
    NT = 15 if kind == "qkv" else 5
    NWG = 16 * NT
    WSTRIDE = 3840 if kind == "qkv" else 1280
    WBYTES = 640 * WSTRIDE
    NST = 10
    DEPTH = 3
    NBUF = 4
    V_LANE = 1
    V_XE, V_XO, V_W = 2, 3, 4
    V_XA = 8
    V_WB = 16
    V_T = 20
    V_XF = 32
    V_WF = 48
    V_ACC = 64
    S_X, S_W, S_WS = 12, 16, 44
    a.label(name)
    a(f"""s_cmp_ge_u32 s2, {NWG}
    s_cbranch_scc1 L_{name}_end
    s_load_dwordx4 s[4:7], s[0:1], 0
    s_load_dwordx4 s[8:11], s[0:1], 16
    s_load_dwordx2 s[26:27], s[0:1], 40
    v_and_b32 v{V_LANE}, 63, v0
    v_lshrrev_b32 v{V_T}, 6, v0
    s_nop 0
    v_readfirstlane_b32 s20, v{V_T}
    s_and_b32 s21, s2, 7
    s_lshr_b32 s22, s2, 3
    s_and_b32 s23, s22, 1
    s_lshl_b32 s21, s21, 1
    s_add_u32 s24, s21, s23
    s_lshr_b32 s25, s22, 1
    s_waitcnt lgkmcnt(0)""")
    if kind == "qkv":
        a(f"""s_mov_b32 s{S_X}, s4
        s_mov_b32 s{S_X+1}, s5
        s_mov_b32 s{S_X+2}, {2048*1280}
        s_mov_b32 s{S_X+3}, 0x00020000
        s_mov_b32 s{S_W}, s6
        s_mov_b32 s{S_W+1}, s7
        s_mov_b32 s{S_W+2}, {WBYTES}
        s_mov_b32 s{S_W+3}, 0x00020000""")
    else:
        a(f"""s_add_u32 s{S_X}, s26, {O_OFF}
        s_addc_u32 s{S_X+1}, s27, 0
        s_mov_b32 s{S_X+2}, {2048*1280}
        s_mov_b32 s{S_X+3}, 0x00020000
        s_mov_b32 s{S_W}, s8
        s_mov_b32 s{S_W+1}, s9
        s_mov_b32 s{S_W+2}, {WBYTES}
        s_mov_b32 s{S_W+3}, 0x00020000""")
    a(f"""s_mov_b32 s{S_WS}, s26
    s_mov_b32 s{S_WS+1}, s27
    s_mov_b32 s{S_WS+2}, {WS_BYTES}
    s_mov_b32 s{S_WS+3}, 0x00020000""")
    T = V_T
    a(f"""v_lshrrev_b32 v{T}, 3, v{V_LANE}
    v_mul_u32_u24 v{T}, 1280, v{T}
    v_and_b32 v{T+1}, 7, v{V_LANE}
    v_lshrrev_b32 v{T+2}, 4, v{V_LANE}
    v_xor_b32 v{T+1}, v{T+1}, v{T+2}
    v_lshlrev_b32 v{T+3}, 4, v{T+1}
    v_add_u32 v{V_XE}, v{T}, v{T+3}
    v_xor_b32 v{T+1}, 4, v{T+1}
    v_lshlrev_b32 v{T+3}, 4, v{T+1}
    v_add_u32 v{V_XO}, v{T}, v{T+3}""")
    a(f"""v_lshrrev_b32 v{T}, 4, v{V_LANE}
    v_mul_u32_u24 v{T+1}, {WSTRIDE}, v{T}
    v_and_b32 v{T+2}, 15, v{V_LANE}
    v_lshlrev_b32 v{T}, 2, v{T}
    v_xor_b32 v{T+2}, v{T+2}, v{T}
    v_lshlrev_b32 v{T+2}, 4, v{T+2}
    v_add_u32 v{V_W}, v{T+1}, v{T+2}""")
    a(f"""s_lshl_b32 s30, s24, 7
    s_lshl_b32 s32, s20, 5
    s_add_u32 s30, s30, s32
    s_mul_i32 s30, s30, 1280
    s_lshl_b32 s31, s20, 4
    s_mul_i32 s31, s31, {WSTRIDE}
    s_lshl_b32 s32, s25, 8
    s_add_u32 s31, s31, s32
    s_lshl_b32 s33, s20, 12
    s_lshl_b32 s34, s20, 12""")
    def dma_list(st):
        b = st % NBUF
        out = []
        for jj in range(4):
            vo = V_XE if jj % 2 == 0 else V_XO
            out.append(f"""s_add_u32 m0, s33, {b*32768 + jj*1024}
            s_add_u32 s35, s30, {jj*10240 + st*128}
            buffer_load_dwordx4 v{vo}, s[{S_X}:{S_X+3}], s35 offen lds""")
        for jj in range(4):
            out.append(f"""s_add_u32 m0, s34, {b*32768 + 16384 + jj*1024}
            s_add_u32 s35, s31, {(st*64 + jj*4)*WSTRIDE}
            buffer_load_dwordx4 v{V_W}, s[{S_W}:{S_W+3}], s35 offen lds""")
        return out
    def dma_stage(st):
        for d in dma_list(st):
            a(d)
    asmlib.stamp(a, 0)
    for st in range(DEPTH):
        dma_stage(st)
    asmlib.stamp(a, 1)
    a(f"""v_and_b32 v{T}, 31, v{V_LANE}
    v_lshrrev_b32 v{T+1}, 5, v{V_LANE}
    v_lshrrev_b32 v{T+2}, 1, v{T}
    v_and_b32 v{T+2}, 7, v{T+2}
    v_xor_b32 v{T+2}, v{T+2}, v{T+1}
    v_lshlrev_b32 v{T+2}, 4, v{T+2}
    v_lshlrev_b32 v{T+3}, 7, v{T}
    v_add_u32 v{T+3}, v{T+3}, v{T+2}
    s_lshr_b32 s36, s20, 1
    s_lshl_b32 s36, s36, 13
    v_add_u32 v{T+3}, s36, v{T+3}""")
    for s_ in range(2):
        for kk in range(4):
            a(f"v_xor_b32 v{V_XA + s_*4 + kk}, {32*kk}, v{T+3}")
            if s_ == 1:
                a(f"v_add_u32 v{V_XA + s_*4 + kk}, 0x10000, v{V_XA + s_*4 + kk}")
    a(f"""v_lshrrev_b32 v{T}, 4, v{V_LANE}
    v_and_b32 v{T+1}, 15, v{V_LANE}
    v_lshrrev_b32 v{T+2}, 2, v{T+1}
    v_and_b32 v{T+3}, 3, v{T+1}
    v_lshrrev_b32 v{T+4}, 1, v{T}
    v_lshlrev_b32 v{T+4}, 3, v{T+4}
    v_add_u32 v{T+4}, v{T+4}, v{T+2}
    v_lshlrev_b32 v{T+4}, 8, v{T+4}
    v_and_b32 v{T+5}, 1, v{T}
    v_lshlrev_b32 v{T+5}, 1, v{T+5}
    v_lshrrev_b32 v{T+6}, 1, v{T+3}
    v_add_u32 v{T+5}, v{T+5}, v{T+6}
    v_lshlrev_b32 v{T+6}, 2, v{T+2}
    v_xor_b32 v{T+5}, v{T+5}, v{T+6}
    v_lshlrev_b32 v{T+5}, 4, v{T+5}
    v_add_u32 v{T+4}, v{T+4}, v{T+5}
    v_and_b32 v{T+5}, 1, v{T+3}
    v_lshlrev_b32 v{T+5}, 3, v{T+5}
    v_add_u32 v{T+4}, v{T+4}, v{T+5}
    s_and_b32 s36, s20, 1
    s_lshl_b32 s36, s36, 7""")
    for s_ in range(2):
        for bb in range(2):
            a(f"""v_xor_b32 v{V_WB + s_*2 + bb}, s36, v{T+4}""")
            if bb:
                a(f"v_xor_b32 v{V_WB + s_*2 + bb}, 64, v{V_WB + s_*2 + bb}")
            if s_ == 1:
                a(f"v_add_u32 v{V_WB + s_*2 + bb}, 0x10000, v{V_WB + s_*2 + bb}")
    for i in range(64):
        a(f"v_mov_b32 v{V_ACC+i}, 0")
    def reads(st, kk):
        b = st % NBUF
        sset = b // 2
        boff = (b % 2) * 32768
        par = kk % 2
        for sub in range(2):
            a(f"ds_read_b128 {vr(V_XF + par*8 + sub*4, 4)}, v{V_XA + sset*4 + kk}{ds_off(boff + sub*4096)}")
        for sub in range(2):
            for q in range(2):
                a(f"ds_read_b64_tr_b16 {vr(V_WF + par*8 + sub*4 + q*2, 2)}, v{V_WB + sset*2 + sub}{ds_off(boff + 16384 + kk*4096 + q*1024)}")
    def mfmas(kk, vtype, dm):
        par = kk % 2
        n = 0
        for i in range(2):
            for j in range(2):
                acc = vr(V_ACC + (i*2 + j)*16, 16)
                if vtype:
                    A = vr(V_XF + par*8 + i*4, 4); B = vr(V_WF + par*8 + j*4, 4)
                else:
                    A = vr(V_WF + par*8 + i*4, 4); B = vr(V_XF + par*8 + j*4, 4)
                a(f"v_mfma_f32_32x32x16_bf16 {acc}, {A}, {B}, {acc}")
                n += 1
                if n % 2 == 1 and dm:
                    a(dm.pop(0))
    def mainloop(vtype):
        for st in range(NST):
            inflight = min(NST - 1, st + DEPTH - 1) - st
            a(f"s_waitcnt vmcnt({8*inflight})")
            a("s_barrier")
            asmlib.stamp(a, 2+st)
            reads(st, 0)
            dm = dma_list(st + DEPTH) if st + DEPTH < NST else []
            for kk in range(4):
                if kk < 3:
                    reads(st, kk + 1)
                    a("s_waitcnt lgkmcnt(6)")
                else:
                    a("s_waitcnt lgkmcnt(0)")
                mfmas(kk, vtype, dm)
    if kind == "qkv":
        a(f"""s_cmp_ge_u32 s25, 10
        s_cbranch_scc1 L_{name}_v""")
        mainloop(False)
        a("s_nop 15\ns_nop 15\ns_barrier")
        asmlib.stamp(a, 12)
        epilogue_qk(a, name, V_LANE, V_T, V_ACC, S_WS)
        a("s_waitcnt vmcnt(0)")
        asmlib.stamp(a, 13)
        asmlib.stamp_dump(a, 14, S_WS, 4, V_T)
        a(f"s_branch L_{name}_end")
        a.label(f"L_{name}_v")
        mainloop(True)
        a("s_nop 15\ns_nop 15\ns_barrier")
        epilogue_v(a, name, V_LANE, V_T, V_ACC, S_WS)
    else:
        mainloop(False)
        a("s_nop 15\ns_nop 15")
        epilogue_out(a, name, V_LANE, V_T, V_ACC)
    a.label(f"L_{name}_end")
    a("s_endpgm")
    return a.text(), 128

def div20(a, vN, vhd, vd, vt):
    a(f"""v_mul_u32_u24 v{vhd}, 52429, v{vN}
    v_lshrrev_b32 v{vhd}, 20, v{vhd}
    v_mul_u32_u24 v{vt}, 20, v{vhd}
    v_sub_u32 v{vd}, v{vN}, v{vt}""")

def stage2(a, name, V_LANE, T, S_WS, part):
    a("s_waitcnt lgkmcnt(0)\ns_barrier")
    for i in range(3):
        R = T + 4*i
        a(f"v_add_u32 v{R}, {256*i}, v0")
        if part == "q":
            a(f"""v_mul_u32_u24 v{R+2}, 52429, v{R}
            v_lshrrev_b32 v{R+2}, 18, v{R+2}
            v_mul_u32_u24 v{R+3}, 5, v{R+2}
            v_sub_u32 v{R+2}, v{R}, v{R+3}
            v_lshlrev_b32 v{R+2}, 2, v{R+2}
            v_lshlrev_b32 v{R+1}, 3, v{R}""")
        else:
            a(f"""v_mul_u32_u24 v{R+2}, 13108, v{R}
            v_lshrrev_b32 v{R+2}, 22, v{R+2}
            v_mul_u32_u24 v{R+3}, 320, v{R+2}
            v_sub_u32 v{R+3}, v{R}, v{R+3}
            v_mul_u32_u24 v{R+1}, 5120, v{R+2}
            v_lshl_add_u32 v{R+1}, v{R+3}, 3, v{R+1}""")
            if part == "k":
                a(f"""v_bfe_u32 v{R+2}, v{R+3}, 6, 1
                v_lshlrev_b32 v{R+2}, 3, v{R+2}
                v_and_b32 v{T+12}, 1, v{R+3}
                v_lshl_add_u32 v{R+2}, v{T+12}, 2, v{R+2}
                v_cmp_gt_u32 vcc, 256, v{R+3}
                v_mov_b32 v{T+12}, 16
                s_nop 0
                v_cndmask_b32 v{R+2}, v{T+12}, v{R+2}, vcc""")
            else:
                a(f"""v_mul_u32_u24 v{R+2}, 6554, v{R+3}
                v_lshrrev_b32 v{R+2}, 18, v{R+2}
                v_mul_u32_u24 v{R+2}, 40, v{R+2}
                v_sub_u32 v{R+2}, v{R+3}, v{R+2}
                v_lshrrev_b32 v{R+2}, 1, v{R+2}""")
        a(f"v_lshlrev_b32 v{R}, 3, v{R}")
    for hl in range(8):
        if part == "q":
            a(f"""s_add_u32 s52, s50, {hl}
            s_lshl_b32 s52, s52, 11
            s_lshl_b32 s53, s24, 7
            s_add_u32 s52, s52, s53
            s_mul_i32 s52, s52, 40""")
        else:
            a(f"""s_add_u32 s52, s50, {hl}
            s_mul_i32 s52, s52, {KV_HEAD}
            s_lshl_b32 s53, s24, 1
            s_mul_i32 s53, s53, 5120
            s_add_u32 s52, s52, s53
            s_add_u32 s52, s52, {KV_OFF + (0 if part == "k" else 2560)}""")
        a(f"""s_sub_u32 s54, s51, {20*hl}
        s_add_u32 s55, s54, 128""")
        for i in range(3):
            R = T + 4*i
            a(f"ds_read_b64 v[{T+14}:{T+15}], v{R}{ds_off(hl*5120)}")
            a(f"""v_cmp_le_i32 vcc, s54, v{R+2}
            v_cmp_gt_i32 s[56:57], s55, v{R+2}
            s_and_b64 vcc, vcc, s[56:57]""")
            if i == 2:
                a(f"""s_movk_i32 s59, 128
                v_cmp_gt_u32 s[56:57], s59, v0
                s_and_b64 vcc, vcc, s[56:57]""")
            a(f"""s_waitcnt lgkmcnt(0)
            s_mov_b64 exec, vcc
            buffer_store_dwordx2 v[{T+14}:{T+15}], v{R+1}, s[{S_WS}:{S_WS+3}], s52 offen
            s_mov_b64 exec, -1""")

def head_base(a, pbase):
    a(f"""s_lshl_b32 s51, s25, 7
    s_sub_u32 s51, s51, {pbase}
    s_mul_i32 s50, s51, 52429
    s_lshr_b32 s50, s50, 20
    s_mul_i32 s52, s50, 20
    s_sub_u32 s51, s51, s52""")

def epilogue_qk(a, name, V_LANE, T, V_ACC, S_WS):
    a(f"""s_lshr_b32 s36, s20, 1
    s_lshl_b32 s36, s36, 6
    v_and_b32 v{T}, 31, v{V_LANE}
    v_add_u32 v{T}, s36, v{T}
    v_lshrrev_b32 v{T+1}, 5, v{V_LANE}
    v_lshlrev_b32 v{T+1}, 2, v{T+1}
    s_and_b32 s36, s20, 1
    s_lshl_b32 s36, s36, 6
    s_cmp_ge_u32 s25, 5
    s_cbranch_scc1 L_{name}_kpart""")
    head_base(a, 0)
    a("s_add_u32 s36, s36, s51")
    for bs in range(2):
        a(f"""v_add_u32 v{T+2+bs}, {32*bs}, v{T}
        v_mul_u32_u24 v{T+2+bs}, 40, v{T+2+bs}""")
    for an in range(2):
        for g in range(4):
            a(f"""s_add_u32 s37, s36, {32*an + 8*g}
            v_add_u32 v{T+4}, s37, v{T+1}""")
            div20(a, T+4, T+5, T+6, T+7)
            a(f"""v_mul_u32_u24 v{T+5}, 5120, v{T+5}
            v_lshl_add_u32 v{T+5}, v{T+6}, 1, v{T+5}""")
            for bs in range(2):
                r = V_ACC + (an*2 + bs)*16 + 4*g
                a(f"""v_mul_f32 v{r}, {f32hex(CSCALE)}, v{r}
                v_mul_f32 v{r+1}, {f32hex(CSCALE)}, v{r+1}
                v_mul_f32 v{r+2}, {f32hex(CSCALE)}, v{r+2}
                v_mul_f32 v{r+3}, {f32hex(CSCALE)}, v{r+3}
                v_cvt_pk_bf16_f32 v{r}, v{r}, v{r+1}
                v_cvt_pk_bf16_f32 v{r+1}, v{r+2}, v{r+3}
                v_add_u32 v{T+7}, v{T+5}, v{T+2+bs}
                ds_write_b64 v{T+7}, {vr(r,2)}""")
    stage2(a, name, V_LANE, T, S_WS, "q")
    a(f"s_branch L_{name}_qkdone")
    a.label(f"L_{name}_kpart")
    head_base(a, 640)
    a("s_add_u32 s36, s36, s51")
    for bs in range(2):
        a(f"""v_add_u32 v{T+4}, {32*bs}, v{T}
        v_lshrrev_b32 v{T+5}, 6, v{T+4}
        v_mul_u32_u24 v{T+5}, 2560, v{T+5}
        v_bfe_u32 v{T+6}, v{T+4}, 5, 1
        v_and_b32 v{T+7}, 31, v{T+4}
        v_lshlrev_b32 v{T+8}, 10, v{T+6}
        v_add_u32 v{T+8}, v{T+8}, v{T+5}
        v_lshl_add_u32 v{T+2+bs}, v{T+7}, 4, v{T+8}
        v_lshlrev_b32 v{T+8}, 8, v{T+6}
        v_add_u32 v{T+8}, v{T+8}, v{T+5}
        v_lshl_add_u32 v{T+8}, v{T+7}, 3, v{T+8}
        v_add_u32 v{T+10+bs}, 2048, v{T+8}""")
    for an in range(2):
        for g in range(4):
            a(f"""s_add_u32 s37, s36, {32*an + 8*g}
            v_add_u32 v{T+4}, s37, v{T+1}""")
            div20(a, T+4, T+5, T+6, T+7)
            a(f"""v_mul_u32_u24 v{T+5}, 5120, v{T+5}
            v_lshrrev_b32 v{T+7}, 3, v{T+6}
            v_lshlrev_b32 v{T+7}, 9, v{T+7}
            v_and_b32 v{T+8}, 7, v{T+6}
            v_lshl_add_u32 v{T+7}, v{T+8}, 1, v{T+7}
            v_cmp_gt_u32 vcc, 16, v{T+6}
            s_nop 1""")
            for bs in range(2):
                r = V_ACC + (an*2 + bs)*16 + 4*g
                a(f"""v_add_u32 v{T+8}, v{T+7}, v{T+2+bs}
                v_cndmask_b32 v{T+8}, v{T+10+bs}, v{T+8}, vcc
                v_add_u32 v{T+8}, v{T+8}, v{T+5}
                v_cvt_pk_bf16_f32 v{r}, v{r}, v{r+1}
                v_cvt_pk_bf16_f32 v{r+1}, v{r+2}, v{r+3}
                ds_write_b64 v{T+8}, {vr(r,2)}""")
    stage2(a, name, V_LANE, T, S_WS, "k")
    a.label(f"L_{name}_qkdone")

def epilogue_v(a, name, V_LANE, T, V_ACC, S_WS):
    head_base(a, 1280)
    a(f"""s_and_b32 s36, s20, 1
    s_lshl_b32 s36, s36, 6
    s_add_u32 s36, s36, s51
    v_and_b32 v{T}, 31, v{V_LANE}
    v_add_u32 v{T}, s36, v{T}
    v_lshrrev_b32 v{T+1}, 5, v{V_LANE}
    v_mul_u32_u24 v{T+1}, 320, v{T+1}
    s_lshr_b32 s36, s20, 1
    s_mul_i32 s36, s36, 2560
    v_add_u32 v{T+1}, s36, v{T+1}""")
    for bn in range(2):
        a(f"v_add_u32 v{T+4}, {32*bn}, v{T}")
        div20(a, T+4, T+5, T+6, T+7)
        a(f"""v_mul_u32_u24 v{T+5}, 5120, v{T+5}
        v_lshl_add_u32 v{T+5}, v{T+6}, 4, v{T+5}
        v_add_u32 v{T+2+bn}, v{T+5}, v{T+1}""")
    for as_ in range(2):
        for bn in range(2):
            for g in range(4):
                r = V_ACC + (as_*2 + bn)*16 + 4*g
                off = as_*1280 + (g >> 1)*640 + (g & 1)*8
                a(f"""v_cvt_pk_bf16_f32 v{r}, v{r}, v{r+1}
                v_cvt_pk_bf16_f32 v{r+1}, v{r+2}, v{r+3}
                ds_write_b64 v{T+2+bn}, {vr(r,2)}{ds_off(off)}""")
    stage2(a, name, V_LANE, T, S_WS, "v")

def epilogue_out(a, name, V_LANE, T, V_ACC):
    a(f"""s_mov_b32 s40, s10
    s_mov_b32 s41, s11
    s_mov_b32 s42, {2048*1280}
    s_mov_b32 s43, 0x00020000
    s_lshr_b32 s36, s20, 1
    s_lshl_b32 s36, s36, 6
    s_lshl_b32 s37, s24, 7
    s_add_u32 s36, s36, s37
    v_and_b32 v{T}, 31, v{V_LANE}
    v_add_u32 v{T}, s36, v{T}
    v_lshrrev_b32 v{T+1}, 5, v{V_LANE}
    v_lshlrev_b32 v{T+1}, 3, v{T+1}
    s_and_b32 s36, s20, 1
    s_lshl_b32 s36, s36, 7
    s_lshl_b32 s37, s25, 8
    s_add_u32 s36, s36, s37""")
    for bs in range(2):
        a(f"""v_add_u32 v{T+2+bs}, {32*bs}, v{T}
        v_mul_u32_u24 v{T+2+bs}, 1280, v{T+2+bs}
        v_add_u32 v{T+2+bs}, v{T+2+bs}, v{T+1}""")
    for an in range(2):
        for bs in range(2):
            for g in range(4):
                r = V_ACC + (an*2 + bs)*16 + 4*g
                off = (32*an + 8*g)*2
                a(f"""v_cvt_pk_bf16_f32 v{r}, v{r}, v{r+1}
                v_cvt_pk_bf16_f32 v{r+1}, v{r+2}, v{r+3}
                buffer_store_dwordx2 {vr(r,2)}, v{T+2+bs}, s[40:43], s36 offen{buf_off(off)}""")
```
